```python
import torch

def _softmax(x, axis=-1):
    return torch.softmax(x, dim=axis)
def _gelu(x):
    return torch.nn.functional.gelu(x, approximate="tanh")
def _silu(x):
    return torch.nn.functional.silu(x)
def _sigmoid(x):
    return torch.sigmoid(x)
def _layernorm(x, axis=-1, eps=1e-5):
    m = x.mean(dim=axis, keepdim=True)
    v = x.var(dim=axis, keepdim=True, unbiased=False)
    return (x - m) / torch.sqrt(v + eps)
def _scatter_add(tgt, idx, src, axis=0):
    return tgt.clone().index_add_(axis, idx, src)
def _segment_sum(src, seg, n):
    out = torch.zeros((n,) + src.shape[1:], dtype=src.dtype)
    return out.index_add_(0, seg, src)
def _pad(x, pw):
    flat = tuple(v for pair in reversed(pw) for v in pair)
    return torch.nn.functional.pad(x, flat)

kernel_name = 'recurrent_scan__gqa_block_cached__mixer_channel_mlp__prompt'

def setup_inputs():

    _w = (lambda a: (lambda t: t.to(torch.bfloat16) if t.is_floating_point() else t)(torch.as_tensor(a)))
    def _A_setup():
        B, Sq, D = 1, 2048, 640
        Hq, Hkv, Sk, Dh = 32, 32, 2048, 192
        assert Hq % Hkv == 0, (Hq, Hkv)
        return {
            "x": _w((lambda *s: torch.randn(*s, dtype=torch.bfloat16) * 0.05)(B, Sq, D)),
            "k_cache": _w((lambda *s: torch.randn(*s, dtype=torch.bfloat16) * 1.6)(B, Hkv, Sk, Dh)),
            "v_cache": _w((lambda *s: torch.randn(*s, dtype=torch.bfloat16) * 0.8)(B, Hkv, Sk, Dh)),
            "wq": _w((lambda *s: torch.randn(*s, dtype=torch.bfloat16) * 1.6)(D, Hq * Dh) * (D ** -0.5)),
            "wo": _w((lambda *s: torch.randn(*s, dtype=torch.bfloat16) * 0.8)(Hq * Dh, D) * ((Hq * Dh) ** -0.5)),
        }
    _A_in = _A_setup()

    def _B_setup():
        B, S, D, F = 1, 2048, 640, 1536
        return {
            "x": _w((lambda *s: torch.randn(*s, dtype=torch.bfloat16) * 0.05)(B, S, D)),
            "w1": _w((lambda *s: torch.randn(*s, dtype=torch.bfloat16) * 3.2)(D, F) * (D ** -0.5)),
            "b1": _w((lambda *s: torch.randn(*s, dtype=torch.bfloat16) * 1.6)(F)),
            "w2": _w((lambda *s: torch.randn(*s, dtype=torch.bfloat16) * 0.2)(F, D) * (F ** -0.5)),
            "b2": _w((lambda *s: torch.randn(*s, dtype=torch.bfloat16) * 0.2)(D)),
        }
    _B_in = _B_setup()

    return {
        "A_x": _A_in["x"],
        "A_k_cache": _A_in["k_cache"],
        "A_v_cache": _A_in["v_cache"],
        "A_wq": _A_in["wq"],
        "A_wo": _A_in["wo"],
        "B_x": _B_in["x"],
        "B_w1": _B_in["w1"],
        "B_b1": _B_in["b1"],
        "B_w2": _B_in["w2"],
        "B_b2": _B_in["b2"],
    }

def reference(A_x, A_k_cache, A_v_cache, A_wq, A_wo, B_x, B_w1, B_b1, B_w2, B_b2):
    def _A_ref(x, k_cache, v_cache, wq, wo):
        B, Sq, D = x.shape
        Hq, Dh = 32, 192
        Hkv = k_cache.shape[1]
        rep = Hq // Hkv
        q = (lambda x, *d: x.permute(*d))((x @ wq).reshape(B, Sq, Hq, Dh), 0, 2, 1, 3)
        k = (lambda x, n, axis: torch.repeat_interleave(x, n, dim=axis))(k_cache, rep, axis=1)
        v = (lambda x, n, axis: torch.repeat_interleave(x, n, dim=axis))(v_cache, rep, axis=1)
        scores = torch.einsum("bhqd,bhkd->bhqk", q, k) * (Dh ** -0.5)
        p = _softmax(scores, axis=-1)
        o = torch.einsum("bhqk,bhkd->bhqd", p, v)
        return (lambda x, *d: x.permute(*d))(o, 0, 2, 1, 3).reshape(B, Sq, Hq * Dh) @ wo

    def _B_ref(x, w1, b1, w2, b2):
        y = _layernorm(x, axis=-1)
        h = _gelu(torch.einsum("bsd,df->bsf", y, w1) + b1)
        return torch.einsum("bsf,fd->bsd", h, w2) + b2

    x = A_x
    xn = _layernorm(x, axis=-1)
    s = _A_ref(xn, A_k_cache, A_v_cache, A_wq, A_wo)
    g = _silu(_B_ref(xn, B_w1, B_b1, B_w2, B_b2))
    return x + s * g
```

```python
import sys

OUT = "recurrent_scan__gqa_block_cached__mixer_channel_mlp__prompt.s"

WS_XN, WS_Y, WS_Q, WS_H, WS_O, WS_P = 0, 4 << 20, 8 << 20, 40 << 20, 48 << 20, 80 << 20
P_STRIDE = 2048 * 640 * 4

KA_X, KA_K, KA_V, KA_WQ, KA_WO, KA_BX, KA_W1, KA_B1, KA_W2, KA_B2, KA_OUT, KA_DBG, KA_WS = [8 * i for i in range(13)]


class Asm:
    def __init__(self):
        self.lines = []

    def __call__(self, s):
        for l in s.strip("\n").split("\n"):
            self.lines.append("    " + l.strip())

    def label(self, l):
        self.lines.append(l + ":")

    def raw(self, l):
        self.lines.append(l)

    def text(self):
        return "\n".join(self.lines) + "\n"


def kernel_header(a, name):
    a.raw(f".globl {name}")
    a.raw(".p2align 8")
    a.raw(f".type {name},@function")
    a.label(name)


def kernel_desc(name, vgpr, sgpr=96):
    acc = (vgpr + 3) // 4 * 4
    return f""".p2align 6
.amdhsa_kernel {name}
  .amdhsa_next_free_vgpr {vgpr}
  .amdhsa_next_free_sgpr {sgpr}
  .amdhsa_accum_offset {acc}
  .amdhsa_group_segment_fixed_size 0
  .amdhsa_kernarg_size 104
  .amdhsa_user_sgpr_count 2
  .amdhsa_user_sgpr_kernarg_segment_ptr 1
  .amdhsa_system_sgpr_workgroup_id_x 1
.end_amdhsa_kernel
"""


def srd(a, sd, sbase, nbytes, off=0):
    if off:
        a(f"s_add_u32 s{sd}, s{sbase}, {off}")
        a(f"s_addc_u32 s{sd + 1}, s{sbase + 1}, 0")
    else:
        a(f"s_mov_b32 s{sd}, s{sbase}")
        a(f"s_mov_b32 s{sd + 1}, s{sbase + 1}")
    a(f"s_mov_b32 s{sd + 2}, {nbytes}")
    a(f"s_mov_b32 s{sd + 3}, 0x20000")


def wave_sum(a, v, t):
    for off in (0x041F, 0x081F, 0x101F, 0x201F, 0x401F):
        a(f"ds_swizzle_b32 v{t}, v{v} offset:{off}")
        a("s_waitcnt lgkmcnt(0)")
        a(f"v_add_f32 v{v}, v{v}, v{t}")
    a(f"v_mov_b32 v{t}, v{v}")
    a("s_nop 1")
    a(f"v_permlane32_swap_b32 v{v}, v{t}")
    a("s_nop 1")
    a(f"v_add_f32 v{v}, v{v}, v{t}")


def rbf(a, v):
    a(f"v_cvt_pk_bf16_f32 v{v}, v{v}, v{v}")
    a(f"v_lshlrev_b32 v{v}, 16, v{v}")


def ln_rows(a, x0, t0):
    s, t, mean, var = t0, t0 + 1, t0 + 2, t0 + 3
    d0 = t0 + 4
    a(f"v_add_f32 v{s}, v{x0}, v{x0 + 1}")
    for i in range(2, 10):
        a(f"v_add_f32 v{s}, v{s}, v{x0 + i}")
    wave_sum(a, s, t)
    a(f"v_mul_f32 v{mean}, s20, v{s}")
    for i in range(10):
        a(f"v_sub_f32 v{d0 + i}, v{x0 + i}, v{mean}")
    a(f"v_mul_f32 v{var}, v{d0}, v{d0}")
    for i in range(1, 10):
        a(f"v_fmac_f32 v{var}, v{d0 + i}, v{d0 + i}")
    wave_sum(a, var, t)
    a(f"v_mul_f32 v{var}, s20, v{var}")
    rbf(a, mean)
    rbf(a, var)
    a(f"v_add_f32 v{var}, s21, v{var}")
    rbf(a, var)
    a(f"v_sqrt_f32 v{var}, v{var}")
    a("s_nop 0")
    rbf(a, var)
    a(f"v_rcp_f32 v{var}, v{var}")
    for i in range(10):
        a(f"v_sub_f32 v{x0 + i}, v{x0 + i}, v{mean}")
        rbf(a, x0 + i)
        a(f"v_mul_f32 v{x0 + i}, v{x0 + i}, v{var}")
        rbf(a, x0 + i)


def gen_ln(a):
    kernel_header(a, "ln_kernel")
    a("s_cmp_ge_u32 s2, 512")
    a("s_cbranch_scc1 L_ln_end")
    a(f"s_load_dwordx2 s[4:5], s[0:1], {KA_X}")
    a(f"s_load_dwordx2 s[6:7], s[0:1], {KA_WS}")
    a("s_waitcnt lgkmcnt(0)")
    srd(a, 8, 4, 2048 * 640 * 2)
    srd(a, 12, 6, 2048 * 640 * 2, WS_XN)
    srd(a, 16, 6, 2048 * 640 * 2, WS_Y)
    a("s_mov_b32 s20, 0x3acccccd")
    a("s_mov_b32 s21, 0x3727c5ac")
    a("v_lshrrev_b32 v1, 6, v0")
    a("v_and_b32 v2, 63, v0")
    a("s_lshl_b32 s3, s2, 2")
    a("v_add_u32 v1, s3, v1")
    a("s_movk_i32 s22, 1280")
    a("v_mul_lo_u32 v1, v1, s22")
    a("v_lshl_add_u32 v1, v2, 2, v1")
    for i in range(5):
        a(f"buffer_load_dword v{10 + i}, v1, s[8:11], 0 offen offset:{256 * i}")
    a("s_waitcnt vmcnt(0)")
    for i in range(5):
        a(f"v_lshlrev_b32 v{20 + 2 * i}, 16, v{10 + i}")
        a(f"v_and_b32 v{21 + 2 * i}, 0xffff0000, v{10 + i}")
    ln_rows(a, 20, 40)
    for i in range(5):
        a(f"v_lshrrev_b32 v{10 + i}, 16, v{20 + 2 * i}")
        a(f"v_or_b32 v{10 + i}, v{10 + i}, v{21 + 2 * i}")
        a(f"buffer_store_dword v{10 + i}, v1, s[12:15], 0 offen offset:{256 * i}")
    ln_rows(a, 20, 40)
    for i in range(5):
        a(f"v_lshrrev_b32 v{30 + i}, 16, v{20 + 2 * i}")
        a(f"v_or_b32 v{30 + i}, v{30 + i}, v{21 + 2 * i}")
        a(f"buffer_store_dword v{30 + i}, v1, s[16:19], 0 offen offset:{256 * i}")
    a("s_waitcnt vmcnt(0)")
    a.label("L_ln_end")
    a("s_endpgm")
    return kernel_desc("ln_kernel", 64, 32)


def gemm_core(a, tag):
    a("v_and_b32 v1, 63, v0")
    a("v_lshrrev_b32 v2, 6, v0")
    a("s_nop 1")
    a("v_readfirstlane_b32 s30, v2")
    a("v_lshrrev_b32 v3, 3, v1")
    a("v_lshl_add_u32 v3, v2, 3, v3")
    a("v_lshrrev_b32 v4, 1, v3")
    a("v_xor_b32 v4, v4, v1")
    a("v_and_b32 v4, 7, v4")
    a("v_mul_lo_u32 v5, v3, s24")
    a("v_lshl_add_u32 v56, v4, 4, v5")
    a("s_lshl_b32 s31, s24, 5")
    for q in range(1, 4):
        a(f"v_add_u32 v{56 + q}, s31, v{56 + q - 1}")
    a("v_lshrrev_b32 v3, 4, v1")
    a("v_lshlrev_b32 v4, 2, v3")
    a("v_xor_b32 v4, v4, v1")
    a("v_and_b32 v4, 15, v4")
    a("v_lshl_add_u32 v3, v2, 2, v3")
    a("v_mul_lo_u32 v5, v3, s25")
    a("v_lshl_add_u32 v60, v4, 4, v5")
    a("s_lshl_b32 s31, s25, 4")
    for q in range(1, 4):
        a(f"v_add_u32 v{60 + q}, s31, v{60 + q - 1}")
    a("v_and_b32 v6, 31, v1")
    a("v_lshrrev_b32 v7, 5, v1")
    a("v_lshrrev_b32 v8, 1, v2")
    a("v_lshl_add_u32 v9, v8, 6, v6")
    a("v_lshrrev_b32 v10, 1, v6")
    a("v_and_b32 v10, 7, v10")
    for ks in range(4):
        a(f"v_add_u32 v11, {2 * ks}, v7")
        a("v_xor_b32 v11, v11, v10")
        a("v_lshlrev_b32 v11, 4, v11")
        a(f"v_lshl_add_u32 v{48 + ks}, v9, 7, v11")
    a("v_and_b32 v11, 15, v1")
    a("v_lshrrev_b32 v11, 2, v11")
    a("v_lshl_add_u32 v12, v7, 3, v11")
    a("v_and_b32 v13, 1, v2")
    a("v_lshrrev_b32 v14, 4, v1")
    a("v_and_b32 v14, 1, v14")
    a("v_and_b32 v15, 3, v1")
    for nt in range(2):
        a("v_lshlrev_b32 v16, 3, v13")
        a(f"v_add_u32 v16, {4 * nt}, v16")
        a("v_lshl_add_u32 v16, v14, 1, v16")
        a("v_lshrrev_b32 v17, 1, v15")
        a("v_add_u32 v16, v16, v17")
        a("v_lshlrev_b32 v17, 2, v11")
        a("v_xor_b32 v16, v16, v17")
        a("v_lshlrev_b32 v16, 4, v16")
        a("v_and_b32 v17, 1, v15")
        a("v_lshl_add_u32 v16, v17, 3, v16")
        a("v_lshl_add_u32 v16, v12, 8, v16")
        a(f"v_add_u32 v{52 + nt}, 16384, v16")
    for i in range(64):
        a(f"v_mov_b32 v{64 + i}, 0")
    a("s_lshl_b32 s32, s30, 10")

    def dma(buf):
        for q in range(4):
            a(f"s_add_u32 m0, s32, {buf * 32768 + q * 4096}")
            a("s_nop 0")
            a(f"buffer_load_dwordx4 v{56 + q}, s[8:11], s26 offen lds")
        for q in range(4):
            a(f"s_add_u32 m0, s32, {buf * 32768 + 16384 + q * 4096}")
            a("s_nop 0")
            a(f"buffer_load_dwordx4 v{60 + q}, s[12:15], s27 offen lds")
        a("s_add_u32 s26, s26, 128")
        a("s_lshl_b32 s31, s25, 6")
        a("s_add_u32 s27, s27, s31")

    def reads(buf, ks, fs):
        for mt in range(2):
            a(f"ds_read_b128 v[{fs + 4 * mt}:{fs + 4 * mt + 3}], v{48 + ks} offset:{buf * 32768 + mt * 4096}")
        for nt in range(2):
            for j in range(2):
                r = fs + 8 + 4 * nt + 2 * j
                a(f"ds_read_b64_tr_b16 v[{r}:{r + 1}], v{52 + nt} offset:{buf * 32768 + (16 * ks + 4 * j) * 256}")

    def stage(buf, last):
        a("s_waitcnt vmcnt(0)")
        a("s_barrier")
        if last:
            a(f"s_cmp_eq_u32 s28, 1")
            a(f"s_cbranch_scc1 L_{tag}_nodma{buf}")
        dma(buf ^ 1)
        if last:
            a.label(f"L_{tag}_nodma{buf}")
        reads(buf, 0, 16)
        for ks in range(4):
            fs = 16 + 16 * (ks & 1)
            if ks < 3:
                reads(buf, ks + 1, 16 + 16 * ((ks + 1) & 1))
                a("s_waitcnt lgkmcnt(6)")
            else:
                a("s_waitcnt lgkmcnt(0)")
            for nt in range(2):
                for mt in range(2):
                    d = 64 + (nt * 2 + mt) * 16
                    a(f"v_mfma_f32_32x32x16_bf16 v[{d}:{d + 15}], v[{fs + 8 + 4 * nt}:{fs + 8 + 4 * nt + 3}], v[{fs + 4 * mt}:{fs + 4 * mt + 3}], v[{d}:{d + 15}]")

    dma(0)
    a.label(f"L_{tag}_loop")
    stage(0, False)
    stage(1, True)
    a("s_sub_u32 s28, s28, 1")
    a("s_cmp_lg_u32 s28, 0")
    a(f"s_cbranch_scc1 L_{tag}_loop")
    a("s_nop 15")


def gen_gemm1(a):
    kernel_header(a, "gemm1_kernel")
    a("s_cmp_ge_u32 s2, 960")
    a("s_cbranch_scc1 L_g1_end")
    a(f"s_load_dwordx2 s[4:5], s[0:1], {KA_WQ}")
    a(f"s_load_dwordx2 s[6:7], s[0:1], {KA_WS}")
    a(f"s_load_dwordx2 s[36:37], s[0:1], {KA_W1}")
    a(f"s_load_dwordx2 s[38:39], s[0:1], {KA_B1}")
    a("s_waitcnt lgkmcnt(0)")
    a("s_and_b32 s33, s2, 15")
    a("s_lshr_b32 s34, s2, 4")
    a("s_movk_i32 s24, 1280")
    a("s_mul_i32 s26, s33, 128*1280")
    a("s_mov_b32 s28, 5")
    a("s_cmp_ge_u32 s34, 48")
    a("s_cbranch_scc1 L_g1_h")
    srd(a, 8, 6, 2048 * 640 * 2, WS_XN)
    srd(a, 12, 4, 640 * 6144 * 2)
    srd(a, 16, 6, 2048 * 6144 * 2, WS_Q)
    a("s_movk_i32 s25, 12288")
    a("s_movk_i32 s35, 12288")
    a("s_lshl_b32 s27, s34, 8")
    a("s_branch L_g1_go")
    a.label("L_g1_h")
    srd(a, 8, 6, 2048 * 640 * 2, WS_Y)
    srd(a, 12, 36, 640 * 1536 * 2)
    srd(a, 16, 6, 2048 * 1536 * 2, WS_H)
    a("s_movk_i32 s25, 3072")
    a("s_movk_i32 s35, 3072")
    a("s_sub_u32 s27, s34, 48")
    a("s_lshl_b32 s27, s27, 8")
    a.label("L_g1_go")
    srd(a, 20, 38, 1536 * 2)
    a("s_mov_b32 s40, s27")
    gemm_core(a, "g1")
    a("s_lshl_b32 s33, s33, 7")
    a("v_add_u32 v9, s33, v9")
    a("v_mul_lo_u32 v9, v9, s35")
    a("v_lshlrev_b32 v10, 7, v13")
    a("v_lshl_add_u32 v10, v7, 3, v10")
    a("v_add_u32 v10, s40, v10")
    a("v_add_u32 v9, v9, v10")
    a("s_lshl_b32 s33, s35, 5")
    a("v_add_u32 v8, s33, v9")
    a("s_cmp_ge_u32 s34, 48")
    a("s_cbranch_scc1 L_g1_eh")
    for nt in range(2):
        for mt in range(2):
            d = 64 + (nt * 2 + mt) * 16
            for g in range(4):
                a(f"v_cvt_pk_bf16_f32 v{16 + 2 * g}, v{d + 4 * g}, v{d + 4 * g + 1}")
                a(f"v_cvt_pk_bf16_f32 v{17 + 2 * g}, v{d + 4 * g + 2}, v{d + 4 * g + 3}")
                a(f"buffer_store_dwordx2 v[{16 + 2 * g}:{17 + 2 * g}], v{9 - mt}, s[16:19], 0 offen offset:{64 * nt + 16 * g}")
    a("s_branch L_g1_end")
    a.label("L_g1_eh")
    a("s_mov_b32 s41, 0x3d372713")
    a("s_mov_b32 s42, 0xc0135761")
    for nt in range(2):
        for g in range(4):
            a(f"buffer_load_dwordx2 v[{32 + 2 * g}:{33 + 2 * g}], v10, s[20:23], 0 offen offset:{64 * nt + 16 * g}")
        a("s_waitcnt vmcnt(0)")
        for mt in range(2):
            d = 64 + (nt * 2 + mt) * 16
            for g in range(4):
                for e in range(4):
                    r = d + 4 * g + e
                    b = 32 + 2 * g + (e >> 1)
                    rbfr = 24 + e
                    a(f"v_cvt_pk_bf16_f32 v{rbfr}, v{r}, v{r}")
                    a(f"v_lshlrev_b32 v{rbfr}, 16, v{rbfr}")
                    if e & 1:
                        a(f"v_and_b32 v28, 0xffff0000, v{b}")
                    else:
                        a(f"v_lshlrev_b32 v28, 16, v{b}")
                    a(f"v_add_f32 v{rbfr}, v{rbfr}, v28")
                    a(f"v_cvt_pk_bf16_f32 v{rbfr}, v{rbfr}, v{rbfr}")
                    a(f"v_lshlrev_b32 v{rbfr}, 16, v{rbfr}")
                    a(f"v_mul_f32 v28, v{rbfr}, v{rbfr}")
                    a(f"v_fma_f32 v28, v28, s41, 1.0")
                    a(f"v_mul_f32 v28, v28, v{rbfr}")
                    a(f"v_mul_f32 v28, s42, v28")
                    a(f"v_exp_f32 v28, v28")
                    a("s_nop 0")
                    a(f"v_add_f32 v28, 1.0, v28")
                    a(f"v_rcp_f32 v28, v28")
                    a("s_nop 0")
                    a(f"v_mul_f32 v{rbfr}, v{rbfr}, v28")
                a(f"v_cvt_pk_bf16_f32 v16, v24, v25")
                a(f"v_cvt_pk_bf16_f32 v17, v26, v27")
                a(f"buffer_store_dwordx2 v[16:17], v{9 - mt}, s[16:19], 0 offen offset:{64 * nt + 16 * g}")
                a("s_nop 0")
    a.label("L_g1_end")
    a("s_endpgm")
    return kernel_desc("gemm1_kernel", 128)


def gen_gemm2(a):
    kernel_header(a, "gemm2_kernel")
    a("s_cmp_ge_u32 s2, 320")
    a("s_cbranch_scc1 L_g2_end")
    a(f"s_load_dwordx2 s[4:5], s[0:1], {KA_WO}")
    a(f"s_load_dwordx2 s[6:7], s[0:1], {KA_WS}")
    a(f"s_load_dwordx2 s[36:37], s[0:1], {KA_W2}")
    a("s_waitcnt lgkmcnt(0)")
    a("s_mov_b32 s34, 0")
    a("s_mov_b32 s33, s2")
    for j in range(3):
        a("s_cmp_ge_u32 s33, 80")
        a("s_cselect_b32 s35, 80, 0")
        a("s_cselect_b32 s42, 1, 0")
        a("s_sub_u32 s33, s33, s35")
        a("s_add_u32 s34, s34, s42")
    a("s_lshr_b32 s41, s33, 4")
    a("s_and_b32 s33, s33, 15")
    a("s_movk_i32 s25, 1280")
    a("s_mul_i32 s40, s34, " + str(P_STRIDE))
    a("s_add_u32 s40, s40, " + str(WS_P))
    a("s_add_u32 s16, s6, s40")
    a("s_addc_u32 s17, s7, 0")
    a(f"s_mov_b32 s18, {P_STRIDE}")
    a("s_mov_b32 s19, 0x20000")
    a("s_cmp_eq_u32 s34, 3")
    a("s_cbranch_scc1 L_g2_h")
    srd(a, 8, 6, 2048 * 6144 * 2, WS_O)
    srd(a, 12, 4, 6144 * 640 * 2)
    a("s_movk_i32 s24, 12288")
    a("s_mul_i32 s35, s34, 2560")
    a("s_mov_b32 s28, 20")
    a("s_cmp_eq_u32 s34, 2")
    a("s_cselect_b32 s28, 8, s28")
    a("s_branch L_g2_go")
    a.label("L_g2_h")
    srd(a, 8, 6, 2048 * 1536 * 2, WS_H)
    srd(a, 12, 36, 1536 * 640 * 2)
    a("s_movk_i32 s24, 3072")
    a("s_mov_b32 s35, 0")
    a("s_mov_b32 s28, 12")
    a.label("L_g2_go")
    a("s_lshl_b32 s26, s33, 7")
    a("s_mul_i32 s26, s26, s24")
    a("s_lshl_b32 s27, s35, 1")
    a("s_add_u32 s26, s26, s27")
    a("s_mul_i32 s27, s35, s25")
    a("s_lshl_b32 s40, s41, 8")
    a("s_add_u32 s27, s27, s40")
    gemm_core(a, "g2")
    a("s_lshl_b32 s33, s33, 7")
    a("v_add_u32 v9, s33, v9")
    a("s_movk_i32 s35, 2560")
    a("v_mul_lo_u32 v9, v9, s35")
    a("v_lshlrev_b32 v10, 8, v13")
    a("v_lshl_add_u32 v10, v7, 4, v10")
    a("s_lshl_b32 s40, s41, 9")
    a("v_add_u32 v10, s40, v10")
    a("v_add_u32 v9, v9, v10")
    a("s_lshl_b32 s33, s35, 5")
    a("v_add_u32 v8, s33, v9")
    for nt in range(2):
        for mt in range(2):
            d = 64 + (nt * 2 + mt) * 16
            for g in range(4):
                a(f"buffer_store_dwordx4 v[{d + 4 * g}:{d + 4 * g + 3}], v{9 - mt}, s[16:19], 0 offen offset:{128 * nt + 32 * g}")
    a.label("L_g2_end")
    a("s_endpgm")
    return kernel_desc("gemm2_kernel", 128)


def gen_final(a):
    kernel_header(a, "final_kernel")
    a("s_cmp_ge_u32 s2, 1280")
    a("s_cbranch_scc1 L_fin_end")
    a(f"s_load_dwordx2 s[4:5], s[0:1], {KA_X}")
    a(f"s_load_dwordx2 s[6:7], s[0:1], {KA_WS}")
    a(f"s_load_dwordx2 s[36:37], s[0:1], {KA_B2}")
    a(f"s_load_dwordx2 s[38:39], s[0:1], {KA_OUT}")
    a("s_waitcnt lgkmcnt(0)")
    srd(a, 8, 4, 2048 * 640 * 2)
    srd(a, 12, 6, 4 * P_STRIDE, WS_P)
    srd(a, 16, 36, 640 * 2)
    srd(a, 20, 38, 2048 * 640 * 2)
    a("s_lshl_b32 s3, s2, 8")
    a("v_add_u32 v1, s3, v0")
    a("v_lshlrev_b32 v2, 4, v1")
    a("v_lshlrev_b32 v3, 3, v1")
    a("s_mov_b32 s24, 0x0199999a")
    a("v_mul_hi_u32 v4, v1, s24")
    a("s_movk_i32 s25, 160")
    a("v_mul_lo_u32 v4, v4, s25")
    a("v_sub_u32 v4, v1, v4")
    a("v_lshlrev_b32 v4, 3, v4")
    a("buffer_load_dwordx4 v[8:11], v2, s[12:15], 0 offen")
    a(f"s_mov_b32 s26, {P_STRIDE}")
    a("buffer_load_dwordx4 v[12:15], v2, s[12:15], s26 offen")
    a(f"s_mov_b32 s27, {2 * P_STRIDE}")
    a("buffer_load_dwordx4 v[16:19], v2, s[12:15], s27 offen")
    a(f"s_mov_b32 s28, {3 * P_STRIDE}")
    a("buffer_load_dwordx4 v[20:23], v2, s[12:15], s28 offen")
    a("buffer_load_dwordx2 v[24:25], v3, s[8:11], 0 offen")
    a("buffer_load_dwordx2 v[26:27], v4, s[16:19], 0 offen")
    a("s_mov_b32 s29, 0xbfb8aa3b")
    a("s_waitcnt vmcnt(0)")
    for e in range(4):
        a(f"v_add_f32 v{8 + e}, v{8 + e}, v{12 + e}")
        a(f"v_add_f32 v{8 + e}, v{8 + e}, v{16 + e}")
        rbf(a, 8 + e)
        rbf(a, 20 + e)
        if e & 1:
            a(f"v_and_b32 v28, 0xffff0000, v{26 + (e >> 1)}")
            a(f"v_and_b32 v29, 0xffff0000, v{24 + (e >> 1)}")
        else:
            a(f"v_lshlrev_b32 v28, 16, v{26 + (e >> 1)}")
            a(f"v_lshlrev_b32 v29, 16, v{24 + (e >> 1)}")
        a(f"v_add_f32 v{20 + e}, v{20 + e}, v28")
        rbf(a, 20 + e)
        a(f"v_mul_f32 v30, s29, v{20 + e}")
        a("v_exp_f32 v30, v30")
        a("s_nop 0")
        a("v_add_f32 v30, 1.0, v30")
        a("v_rcp_f32 v30, v30")
        a("s_nop 0")
        a(f"v_mul_f32 v{20 + e}, v{20 + e}, v30")
        rbf(a, 20 + e)
        a(f"v_mul_f32 v{8 + e}, v{8 + e}, v{20 + e}")
        rbf(a, 8 + e)
        a(f"v_add_f32 v{8 + e}, v{8 + e}, v29")
    a("v_cvt_pk_bf16_f32 v12, v8, v9")
    a("v_cvt_pk_bf16_f32 v13, v10, v11")
    a("buffer_store_dwordx2 v[12:13], v3, s[20:23], 0 offen")
    a.label("L_fin_end")
    a("s_endpgm")
    return kernel_desc("final_kernel", 32)


def gen_attn(a):
    O0, S0, Q0, P0, KF, VF = 0, 96, 128, 176, 192, 208
    kernel_header(a, "attn_kernel")
    a("s_cmp_ge_u32 s2, 256")
    a("s_cbranch_scc1 L_at_end")
    a(f"s_load_dwordx2 s[4:5], s[0:1], {KA_K}")
    a(f"s_load_dwordx2 s[6:7], s[0:1], {KA_V}")
    a(f"s_load_dwordx2 s[36:37], s[0:1], {KA_WS}")
    a("s_waitcnt lgkmcnt(0)")
    srd(a, 8, 4, 32 * 2048 * 192 * 2)
    srd(a, 12, 6, 32 * 2048 * 192 * 2)
    srd(a, 16, 36, 2048 * 6144 * 2, WS_Q)
    srd(a, 20, 36, 2048 * 6144 * 2, WS_O)
    a("s_and_b32 s33, s2, 31")
    a("s_lshr_b32 s34, s2, 5")
    a("s_mul_i32 s26, s33, 786432")
    a("s_mov_b32 s27, 0x3dd53b94")
    a("v_and_b32 v224, 63, v0")
    a("v_lshrrev_b32 v225, 6, v0")
    a("s_nop 1")
    a("v_readfirstlane_b32 s30, v225")
    a("v_and_b32 v226, 31, v224")
    a("v_lshrrev_b32 v227, 5, v224")
    a("s_lshl_b32 s35, s34, 8")
    a("v_lshl_add_u32 v228, v225, 5, v226")
    a("v_add_u32 v228, s35, v228")
    a("s_movk_i32 s31, 12288")
    a("v_mul_lo_u32 v229, v228, s31")
    a("s_mul_i32 s35, s33, 384")
    a("v_lshl_add_u32 v229, v227, 4, v229")
    a("v_add_u32 v229, s35, v229")
    for ks in range(12):
        a(f"buffer_load_dwordx4 v[{Q0 + 4 * ks}:{Q0 + 4 * ks + 3}], v229, s[16:19], 0 offen offset:{32 * ks}")
    for q in range(3):
        a(f"v_lshl_add_u32 v230, v225, 6, v224")
        a(f"v_add_u32 v230, {512 * q}, v230")
        a("s_movk_i32 s31, 2731")
        a("v_mul_lo_u32 v231, v230, s31")
        a("v_lshrrev_b32 v231, 16, v231")
        a("v_mul_u32_u24 v232, 24, v231")
        a("v_sub_u32 v232, v230, v232")
        a("v_lshrrev_b32 v233, 1, v231")
        a("v_and_b32 v234, 7, v233")
        a("v_xor_b32 v234, v234, v232")
        a("v_mul_u32_u24 v235, 384, v231")
        a(f"v_lshl_add_u32 v{240 + q}, v234, 4, v235")
        a("v_and_b32 v234, 1, v233")
        a("v_lshlrev_b32 v234, 2, v234")
        a("v_xor_b32 v234, v234, v232")
        a(f"v_lshl_add_u32 v{243 + q}, v234, 4, v235")
    a("v_lshrrev_b32 v230, 1, v226")
    a("v_and_b32 v230, 7, v230")
    a("v_mul_u32_u24 v231, 384, v226")
    for k4 in range(4):
        a(f"v_add_u32 v232, {2 * k4}, v227")
        a("v_xor_b32 v232, v232, v230")
        a(f"v_lshl_add_u32 v{246 + k4}, v232, 4, v231")
    a("v_and_b32 v230, 15, v224")
    a("v_lshrrev_b32 v230, 2, v230")
    a("v_lshl_add_u32 v230, v227, 2, v230")
    a("v_mul_u32_u24 v230, 384, v230")
    a("v_lshrrev_b32 v231, 4, v224")
    a("v_and_b32 v231, 1, v231")
    a("v_lshl_add_u32 v230, v231, 5, v230")
    a("v_and_b32 v231, 3, v224")
    a("v_lshl_add_u32 v230, v231, 3, v230")
    a("v_add_u32 v230, 49152, v230")
    a("v_lshrrev_b32 v231, 3, v224")
    a("v_and_b32 v231, 1, v231")
    a("v_lshl_add_u32 v250, v231, 6, v230")
    a("v_xor_b32 v231, 1, v231")
    a("v_lshl_add_u32 v251, v231, 6, v230")
    for i in range(96):
        a(f"v_mov_b32 v{O0 + i}, 0")
    a("v_mov_b32 v252, 0xff800000")
    a("v_mov_b32 v253, 0")
    a("s_mov_b32 s27, 0x3dd53b94")
    a("s_lshl_b32 s32, s30, 10")
    a("s_mov_b32 s28, 16")

    def dma(buf):
        for q in range(3):
            a(f"s_add_u32 m0, s32, {buf * 24576 + q * 8192}")
            a("s_nop 0")
            a(f"buffer_load_dwordx4 v{240 + q}, s[8:11], s26 offen lds")
        for q in range(3):
            a(f"s_add_u32 m0, s32, {49152 + buf * 24576 + q * 8192}")
            a("s_nop 0")
            a(f"buffer_load_dwordx4 v{243 + q}, s[12:15], s26 offen lds")
        a("s_add_u32 s26, s26, 24576")

    def tile(buf, last):
        a("s_waitcnt vmcnt(0)")
        a("s_barrier")
        if last:
            a("s_cmp_eq_u32 s28, 1")
            a(f"s_cbranch_scc1 L_at_nodma")
        dma(buf ^ 1)
        if last:
            a.label("L_at_nodma")
        seq = [(t, ks) for ks in range(12) for t in range(2)]

        def kread(i):
            t, ks = seq[i]
            f = KF + 4 * (i & 3)
            a(f"ds_read_b128 v[{f}:{f + 3}], v{246 + (ks & 3)} offset:{buf * 24576 + t * 12288 + 128 * (ks >> 2)}")
        kread(0); kread(1); kread(2)
        for i in range(24):
            t, ks = seq[i]
            if i + 3 < 24:
                kread(i + 3)
                a("s_waitcnt lgkmcnt(3)")
            else:
                a(f"s_waitcnt lgkmcnt({23 - i})")
            f = KF + 4 * (i & 3)
            d = S0 + 16 * t
            c = "0" if ks == 0 else f"v[{d}:{d + 15}]"
            a(f"v_mfma_f32_32x32x16_bf16 v[{d}:{d + 15}], v[{f}:{f + 3}], v[{Q0 + 4 * ks}:{Q0 + 4 * ks + 3}], {c}")
        a("s_nop 15")
        a(f"v_max3_f32 v230, v{S0}, v{S0 + 1}, v{S0 + 2}")
        for i in range(3, 31, 2):
            a(f"v_max3_f32 v230, v230, v{S0 + i}, v{S0 + i + 1}")
        a(f"v_max_f32 v230, v230, v{S0 + 31}")
        a("v_mov_b32 v231, v230")
        a("s_nop 1")
        a("v_permlane32_swap_b32 v230, v231")
        a("s_nop 1")
        a("v_max3_f32 v230, v230, v231, v252")
        a("v_sub_f32 v231, v252, v230")
        a("v_mul_f32 v231, s27, v231")
        a("v_exp_f32 v231, v231")
        a("v_mov_b32 v252, v230")
        a("v_mul_f32 v232, s27, v230")
        a("v_mul_f32 v253, v253, v231")
        for i in range(32):
            a(f"v_fma_f32 v{S0 + i}, v{S0 + i}, s27, -v232")
            a(f"v_exp_f32 v{S0 + i}, v{S0 + i}")
        a("v_cmp_neq_f32 vcc, 1.0, v231")
        for i in range(32):
            a(f"v_add_f32 v253, v253, v{S0 + i}")
        for i in range(16):
            a(f"v_cvt_pk_bf16_f32 v{P0 + i}, v{S0 + 2 * i}, v{S0 + 2 * i + 1}")
        a(f"s_cbranch_vccz L_at_nors{buf}")
        for i in range(96):
            a(f"v_mul_f32 v{O0 + i}, v{O0 + i}, v231")
        a.label(f"L_at_nors{buf}")
        seq2 = [(d, kk) for kk in range(4) for d in range(6)]

        def vread(i):
            d, kk = seq2[i]
            f = VF + 4 * (i & 3)
            for j in range(2):
                a(f"ds_read_b64_tr_b16 v[{f + 2 * j}:{f + 2 * j + 1}], v{250 + (d & 1)} offset:{buf * 24576 + 128 * (d >> 1) + (16 * kk + 8 * j) * 384}")
        vread(0); vread(1); vread(2)
        for i in range(24):
            d, kk = seq2[i]
            if i + 3 < 24:
                vread(i + 3)
                a("s_waitcnt lgkmcnt(6)")
            else:
                a(f"s_waitcnt lgkmcnt({2 * (23 - i)})")
            f = VF + 4 * (i & 3)
            o = O0 + 16 * d
            a(f"v_mfma_f32_32x32x16_bf16 v[{o}:{o + 15}], v[{f}:{f + 3}], v[{P0 + 4 * kk}:{P0 + 4 * kk + 3}], v[{o}:{o + 15}]")

    dma(0)
    a.label("L_at_loop")
    tile(0, False)
    tile(1, True)
    a("s_sub_u32 s28, s28, 1")
    a("s_cmp_lg_u32 s28, 0")
    a("s_cbranch_scc1 L_at_loop")
    a("s_nop 15")
    a("v_mov_b32 v231, v253")
    a("s_nop 1")
    a("v_permlane32_swap_b32 v253, v231")
    a("s_nop 1")
    a("v_add_f32 v253, v253, v231")
    a("v_rcp_f32 v253, v253")
    a("v_lshlrev_b32 v230, 3, v227")
    a("v_sub_u32 v229, v229, v230")
    for d in range(6):
        for g in range(4):
            r = O0 + 16 * d + 4 * g
            for e in range(4):
                a(f"v_mul_f32 v{r + e}, v{r + e}, v253")
            a(f"v_cvt_pk_bf16_f32 v{r}, v{r}, v{r + 1}")
            a(f"v_cvt_pk_bf16_f32 v{r + 1}, v{r + 2}, v{r + 3}")
            a(f"buffer_store_dwordx2 v[{r}:{r + 1}], v229, s[20:23], 0 offen offset:{64 * d + 16 * g}")
    a.label("L_at_end")
    a("s_endpgm")
    return kernel_desc("attn_kernel", 256)


def main():
    import struct, math
    a = Asm()
    a.raw("; @launch kernel=ln_kernel grid=(512,1,1) block=(256,1,1) lds=0")
    a.raw("; @launch kernel=gemm1_kernel grid=(960,1,1) block=(256,1,1) lds=65536")
    a.raw("; @launch kernel=attn_kernel grid=(256,1,1) block=(512,1,1) lds=98304")
    a.raw("; @launch kernel=gemm2_kernel grid=(320,1,1) block=(256,1,1) lds=65536")
    a.raw("; @launch kernel=final_kernel grid=(1280,1,1) block=(256,1,1) lds=0")
    a.raw('.amdgcn_target "amdgcn-amd-amdhsa--gfx950"')
    a.raw(".text")
    descs = [gen_ln(a), gen_gemm1(a), gen_attn(a), gen_gemm2(a), gen_final(a)]
    a.raw('.section .rodata,"a"')
    txt = a.text() + "".join(descs)
    c = math.log2(math.e) / math.sqrt(192.0)
    cbits = struct.unpack("<I", struct.pack("<f", c))[0]
    txt = txt.replace("0x3dd53b94", hex(cbits))
    open(OUT, "w").write(txt)


main()
```

```python
import sys, os
EXP = os.environ.get('EXP', '')

OUT = os.environ.get("OUTS", "recurrent_scan__gqa_block_cached__mixer_channel_mlp__prompt.s")

WS_XN, WS_Y, WS_Q, WS_H, WS_O, WS_P = 0, 4 << 20, 8 << 20, 40 << 20, 48 << 20, 80 << 20
P_STRIDE = 2048 * 640 * 4

KA_X, KA_K, KA_V, KA_WQ, KA_WO, KA_BX, KA_W1, KA_B1, KA_W2, KA_B2, KA_OUT, KA_DBG, KA_WS = [8 * i for i in range(13)]


class Asm:
    def __init__(self):
        self.lines = []

    def __call__(self, s):
        for l in s.strip("\n").split("\n"):
            self.lines.append("    " + l.strip())

    def label(self, l):
        self.lines.append(l + ":")

    def raw(self, l):
        self.lines.append(l)

    def text(self):
        return "\n".join(self.lines) + "\n"


def kernel_header(a, name):
    a.raw(f".globl {name}")
    a.raw(".p2align 8")
    a.raw(f".type {name},@function")
    a.label(name)


def kernel_desc(name, vgpr, sgpr=96):
    acc = (vgpr + 3) // 4 * 4
    return f""".p2align 6
.amdhsa_kernel {name}
  .amdhsa_next_free_vgpr {vgpr}
  .amdhsa_next_free_sgpr {sgpr}
  .amdhsa_accum_offset {acc}
  .amdhsa_group_segment_fixed_size 0
  .amdhsa_kernarg_size 104
  .amdhsa_user_sgpr_count 2
  .amdhsa_user_sgpr_kernarg_segment_ptr 1
  .amdhsa_system_sgpr_workgroup_id_x 1
.end_amdhsa_kernel
"""


def srd(a, sd, sbase, nbytes, off=0):
    if off:
        a(f"s_add_u32 s{sd}, s{sbase}, {off}")
        a(f"s_addc_u32 s{sd + 1}, s{sbase + 1}, 0")
    else:
        a(f"s_mov_b32 s{sd}, s{sbase}")
        a(f"s_mov_b32 s{sd + 1}, s{sbase + 1}")
    a(f"s_mov_b32 s{sd + 2}, {nbytes}")
    a(f"s_mov_b32 s{sd + 3}, 0x20000")


def wave_sum(a, v, t):
    for off in (0x041F, 0x081F, 0x101F, 0x201F, 0x401F):
        a(f"ds_swizzle_b32 v{t}, v{v} offset:{off}")
        a("s_waitcnt lgkmcnt(0)")
        a(f"v_add_f32 v{v}, v{v}, v{t}")
    a(f"v_mov_b32 v{t}, v{v}")
    a("s_nop 1")
    a(f"v_permlane32_swap_b32 v{v}, v{t}")
    a("s_nop 1")
    a(f"v_add_f32 v{v}, v{v}, v{t}")


def rbf(a, v):
    a(f"v_cvt_pk_bf16_f32 v{v}, v{v}, v{v}")
    a(f"v_lshlrev_b32 v{v}, 16, v{v}")


def ln_rows(a, x0, t0):
    s, t, mean, var = t0, t0 + 1, t0 + 2, t0 + 3
    d0 = t0 + 4
    a(f"v_add_f32 v{s}, v{x0}, v{x0 + 1}")
    for i in range(2, 10):
        a(f"v_add_f32 v{s}, v{s}, v{x0 + i}")
    wave_sum(a, s, t)
    a(f"v_mul_f32 v{mean}, s20, v{s}")
    for i in range(10):
        a(f"v_sub_f32 v{d0 + i}, v{x0 + i}, v{mean}")
    a(f"v_mul_f32 v{var}, v{d0}, v{d0}")
    for i in range(1, 10):
        a(f"v_fmac_f32 v{var}, v{d0 + i}, v{d0 + i}")
    wave_sum(a, var, t)
    a(f"v_mul_f32 v{var}, s20, v{var}")
    rbf(a, mean)
    rbf(a, var)
    a(f"v_add_f32 v{var}, s21, v{var}")
    rbf(a, var)
    a(f"v_sqrt_f32 v{var}, v{var}")
    a("s_nop 0")
    rbf(a, var)
    a(f"v_rcp_f32 v{var}, v{var}")
    for i in range(10):
        a(f"v_sub_f32 v{x0 + i}, v{x0 + i}, v{mean}")
        rbf(a, x0 + i)
        a(f"v_mul_f32 v{x0 + i}, v{x0 + i}, v{var}")
        rbf(a, x0 + i)


def gen_ln(a):
    kernel_header(a, "ln_kernel")
    a("s_cmp_ge_u32 s2, 512")
    a("s_cbranch_scc1 L_ln_end")
    a(f"s_load_dwordx2 s[4:5], s[0:1], {KA_X}")
    a(f"s_load_dwordx2 s[6:7], s[0:1], {KA_WS}")
    a("s_waitcnt lgkmcnt(0)")
    srd(a, 8, 4, 2048 * 640 * 2)
    srd(a, 12, 6, 2048 * 640 * 2, WS_XN)
    srd(a, 16, 6, 2048 * 640 * 2, WS_Y)
    a("s_mov_b32 s20, 0x3acccccd")
    a("s_mov_b32 s21, 0x3727c5ac")
    a("v_lshrrev_b32 v1, 6, v0")
    a("v_and_b32 v2, 63, v0")
    a("s_lshl_b32 s3, s2, 2")
    a("v_add_u32 v1, s3, v1")
    a("s_movk_i32 s22, 1280")
    a("v_mul_lo_u32 v1, v1, s22")
    a("v_lshl_add_u32 v1, v2, 2, v1")
    for i in range(5):
        a(f"buffer_load_dword v{10 + i}, v1, s[8:11], 0 offen offset:{256 * i}")
    a("s_waitcnt vmcnt(0)")
    for i in range(5):
        a(f"v_lshlrev_b32 v{20 + 2 * i}, 16, v{10 + i}")
        a(f"v_and_b32 v{21 + 2 * i}, 0xffff0000, v{10 + i}")
    ln_rows(a, 20, 40)
    for i in range(5):
        a(f"v_lshrrev_b32 v{10 + i}, 16, v{20 + 2 * i}")
        a(f"v_or_b32 v{10 + i}, v{10 + i}, v{21 + 2 * i}")
        a(f"buffer_store_dword v{10 + i}, v1, s[12:15], 0 offen offset:{256 * i}")
    ln_rows(a, 20, 40)
    for i in range(5):
        a(f"v_lshrrev_b32 v{30 + i}, 16, v{20 + 2 * i}")
        a(f"v_or_b32 v{30 + i}, v{30 + i}, v{21 + 2 * i}")
        a(f"buffer_store_dword v{30 + i}, v1, s[16:19], 0 offen offset:{256 * i}")
    a("s_waitcnt vmcnt(0)")
    a.label("L_ln_end")
    a("s_endpgm")
    return kernel_desc("ln_kernel", 64, 32)


def gemm_core(a, tag):
    a("v_and_b32 v1, 63, v0")
    a("v_lshrrev_b32 v2, 6, v0")
    a("s_nop 1")
    a("v_readfirstlane_b32 s30, v2")
    a("v_lshrrev_b32 v3, 3, v1")
    a("v_lshl_add_u32 v3, v2, 3, v3")
    a("v_lshrrev_b32 v4, 1, v3")
    a("v_xor_b32 v4, v4, v1")
    a("v_and_b32 v4, 7, v4")
    a("v_mul_lo_u32 v5, v3, s24")
    a("v_lshl_add_u32 v56, v4, 4, v5")
    a("s_lshl_b32 s31, s24, 6")
    for q in range(1, 4):
        a(f"v_add_u32 v{56 + q}, s31, v{56 + q - 1}")
    a("v_lshrrev_b32 v3, 4, v1")
    a("v_lshlrev_b32 v4, 2, v3")
    a("v_xor_b32 v4, v4, v1")
    a("v_and_b32 v4, 15, v4")
    a("v_lshl_add_u32 v3, v2, 2, v3")
    a("v_mul_lo_u32 v5, v3, s25")
    a("v_lshl_add_u32 v60, v4, 4, v5")
    a("s_lshl_b32 s31, s25, 5")
    a("v_add_u32 v61, s31, v60")
    a("v_and_b32 v6, 31, v1")
    a("v_lshrrev_b32 v7, 5, v1")
    a("v_lshrrev_b32 v8, 1, v2")
    a("v_lshl_add_u32 v9, v8, 6, v6")
    a("v_lshrrev_b32 v10, 1, v6")
    a("v_and_b32 v10, 7, v10")
    for ks in range(4):
        a(f"v_add_u32 v11, {2 * ks}, v7")
        a("v_xor_b32 v11, v11, v10")
        a("v_lshlrev_b32 v11, 4, v11")
        a(f"v_lshl_add_u32 v{48 + ks}, v9, 7, v11")
    a("v_and_b32 v11, 15, v1")
    a("v_lshrrev_b32 v11, 2, v11")
    a("v_lshl_add_u32 v12, v7, 3, v11")
    a("v_and_b32 v13, 1, v2")
    a("v_lshrrev_b32 v14, 4, v1")
    a("v_and_b32 v14, 1, v14")
    a("v_and_b32 v15, 3, v1")
    for nt in range(2):
        a("v_lshlrev_b32 v16, 3, v13")
        a(f"v_add_u32 v16, {4 * nt}, v16")
        a("v_lshl_add_u32 v16, v14, 1, v16")
        a("v_lshrrev_b32 v17, 1, v15")
        a("v_add_u32 v16, v16, v17")
        a("v_lshlrev_b32 v17, 2, v11")
        a("v_xor_b32 v16, v16, v17")
        a("v_lshlrev_b32 v16, 4, v16")
        a("v_and_b32 v17, 1, v15")
        a("v_lshl_add_u32 v16, v17, 3, v16")
        a("v_lshl_add_u32 v16, v12, 8, v16")
        a(f"v_add_u32 v{52 + nt}, 32768, v16")
    for i in range(64):
        a(f"v_mov_b32 v{64 + i}, 0")
    a("s_lshl_b32 s32, s30, 10")
    a("s_mov_b32 s44, 0")
    a("s_mov_b32 s45, 0")
    a("s_mov_b32 s46, -98304")
    a("s_mov_b32 s47, 49152")

    def dma():
        for q in range(4):
            a(f"s_add_u32 m0, s32, {q * 8192}")
            a("s_nop 0")
            a(f"buffer_load_dwordx4 v{56 + q}, s[8:11], s26 offen lds")
        for q in range(2):
            a(f"s_add_u32 m0, s32, {32768 + q * 8192}")
            a("s_nop 0")
            a(f"buffer_load_dwordx4 v{60 + q}, s[12:15], s27 offen lds")
        a("s_add_u32 s26, s26, 128")
        a("s_lshl_b32 s31, s25, 6")
        a("s_add_u32 s27, s27, s31")
        a("s_add_u32 s32, s32, 49152")
        a("s_add_u32 s45, s45, 1")
        a("s_cmp_eq_u32 s45, 3")
        a("s_cselect_b32 s31, 147456, 0")
        a("s_cselect_b32 s45, 0, s45")
        a("s_sub_u32 s32, s32, s31")

    def reads(ks, fs):
        if 'gnord' in EXP:
            return
        for mt in range(2):
            a(f"ds_read_b128 v[{fs + 4 * mt}:{fs + 4 * mt + 3}], v{48 + ks} offset:{mt * 4096}")
        for nt in range(2):
            for j in range(2):
                r = fs + 8 + 4 * nt + 2 * j
                a(f"ds_read_b64_tr_b16 v[{r}:{r + 1}], v{52 + nt} offset:{(16 * ks + 4 * j) * 256}")

    dma(); dma()
    a.label(f"L_{tag}_loop")
    a("s_waitcnt vmcnt(6)")
    a("s_barrier")
    if 'gnodma' not in EXP:
        dma()
    reads(0, 16)
    for ks in range(4):
        fs = 16 + 16 * (ks & 1)
        if ks < 3:
            reads(ks + 1, 16 + 16 * ((ks + 1) & 1))
            a("s_waitcnt lgkmcnt(6)")
        else:
            a("s_waitcnt lgkmcnt(0)")
            a("s_add_u32 s44, s44, 1")
            a("s_cmp_eq_u32 s44, 3")
            a("s_cselect_b32 s31, s46, s47")
            a("s_cselect_b32 s44, 0, s44")
            for i in range(6):
                a(f"v_add_u32 v{48 + i}, s31, v{48 + i}")
        for nt in range(2):
            for mt in range(2):
                d = 64 + (nt * 2 + mt) * 16
                a(f"v_mfma_f32_32x32x16_bf16 v[{d}:{d + 15}], v[{fs + 8 + 4 * nt}:{fs + 8 + 4 * nt + 3}], v[{fs + 4 * mt}:{fs + 4 * mt + 3}], v[{d}:{d + 15}]")
    a("s_sub_u32 s28, s28, 1")
    a("s_cmp_lg_u32 s28, 0")
    a(f"s_cbranch_scc1 L_{tag}_loop")
    a("s_waitcnt vmcnt(0)")
    a("s_nop 15")


def gen_gemm1(a):
    kernel_header(a, "gemm1_kernel")
    a("s_cmp_ge_u32 s2, 480")
    a("s_cbranch_scc1 L_g1_end")
    a(f"s_load_dwordx2 s[4:5], s[0:1], {KA_WQ}")
    a(f"s_load_dwordx2 s[6:7], s[0:1], {KA_WS}")
    a(f"s_load_dwordx2 s[36:37], s[0:1], {KA_W1}")
    a(f"s_load_dwordx2 s[38:39], s[0:1], {KA_B1}")
    a("s_waitcnt lgkmcnt(0)")
    a("s_and_b32 s33, s2, 7")
    a("s_lshr_b32 s34, s2, 3")
    a("s_movk_i32 s24, 1280")
    a("s_mul_i32 s26, s33, 256*1280")
    a("s_mov_b32 s28, 10")
    a("s_cmp_ge_u32 s34, 48")
    a("s_cbranch_scc1 L_g1_h")
    srd(a, 8, 6, 2048 * 640 * 2, WS_XN)
    srd(a, 12, 4, 640 * 6144 * 2)
    srd(a, 16, 6, 2048 * 12544, WS_Q)
    a("s_movk_i32 s25, 12288")
    a("s_movk_i32 s35, 12544")
    a("s_lshl_b32 s27, s34, 8")
    a("s_branch L_g1_go")
    a.label("L_g1_h")
    srd(a, 8, 6, 2048 * 640 * 2, WS_Y)
    srd(a, 12, 36, 640 * 1536 * 2)
    srd(a, 16, 6, 2048 * 3200, WS_H)
    a("s_movk_i32 s25, 3072")
    a("s_movk_i32 s35, 3200")
    a("s_sub_u32 s27, s34, 48")
    a("s_lshl_b32 s27, s27, 8")
    a.label("L_g1_go")
    srd(a, 20, 38, 1536 * 2)
    a("s_mov_b32 s40, s27")
    gemm_core(a, "g1")
    a("s_lshl_b32 s33, s33, 8")
    a("v_add_u32 v9, s33, v9")
    a("v_mul_lo_u32 v9, v9, s35")
    a("v_lshlrev_b32 v10, 7, v13")
    a("v_lshl_add_u32 v10, v7, 3, v10")
    a("v_add_u32 v10, s40, v10")
    a("v_add_u32 v9, v9, v10")
    a("s_lshl_b32 s33, s35, 5")
    a("v_add_u32 v8, s33, v9")
    a("s_cmp_ge_u32 s34, 48")
    a("s_cbranch_scc1 L_g1_eh")
    a("s_barrier")
    a("v_lshlrev_b32 v11, 13, v2")
    a("v_lshl_add_u32 v12, v6, 7, v11")
    a("v_lshl_add_u32 v12, v7, 3, v12")
    for nt in range(2):
        for mt in range(2):
            d = 64 + (nt * 2 + mt) * 16
            for g in range(4):
                a(f"v_cvt_pk_bf16_f32 v{16 + 2 * g}, v{d + 4 * g}, v{d + 4 * g + 1}")
                a(f"v_cvt_pk_bf16_f32 v{17 + 2 * g}, v{d + 4 * g + 2}, v{d + 4 * g + 3}")
                a(f"ds_write_b64 v12, v[{16 + 2 * g}:{17 + 2 * g}] offset:{mt * 4096 + 64 * nt + 16 * g}")
    a("v_lshl_add_u32 v12, v1, 4, v11")
    a("v_lshrrev_b32 v14, 3, v1")
    a("v_lshrrev_b32 v8, 1, v2")
    a("v_lshl_add_u32 v14, v8, 6, v14")
    a("s_lshr_b32 s33, s33, 5")
    a("v_and_b32 v15, 7, v1")
    a("v_lshlrev_b32 v15, 4, v15")
    a("v_lshl_add_u32 v15, v13, 7, v15")
    a("v_add_u32 v15, s40, v15")
    a("s_and_b32 s43, s2, 7")
    a("s_lshl_b32 s43, s43, 8")
    a("v_add_u32 v14, s43, v14")
    a("v_mul_lo_u32 v14, v14, s35")
    a("v_add_u32 v14, v14, v15")
    a("s_lshl_b32 s43, s35, 3")
    a("s_waitcnt lgkmcnt(0)")
    for i in range(8):
        a(f"ds_read_b128 v[{16 + 4 * i}:{19 + 4 * i}], v12 offset:{1024 * i}")
    for i in range(8):
        a(f"s_waitcnt lgkmcnt({7 - i})")
        a(f"buffer_store_dwordx4 v[{16 + 4 * i}:{19 + 4 * i}], v14, s[16:19], 0 offen")
        a("v_add_u32 v14, s43, v14")
    a("s_branch L_g1_end")
    a.label("L_g1_eh")
    a("s_mov_b32 s41, 0x3d372713")
    a("s_mov_b32 s42, 0xc0135761")
    for nt in range(2):
        for g in range(4):
            a(f"buffer_load_dwordx2 v[{32 + 2 * g}:{33 + 2 * g}], v10, s[20:23], 0 offen offset:{64 * nt + 16 * g}")
        a("s_waitcnt vmcnt(0)")
        for mt in range(2):
            d = 64 + (nt * 2 + mt) * 16
            for g in range(4):
                for e in range(4):
                    r = d + 4 * g + e
                    b = 32 + 2 * g + (e >> 1)
                    rbfr = 24 + e
                    a(f"v_cvt_pk_bf16_f32 v{rbfr}, v{r}, v{r}")
                    a(f"v_lshlrev_b32 v{rbfr}, 16, v{rbfr}")
                    if e & 1:
                        a(f"v_and_b32 v28, 0xffff0000, v{b}")
                    else:
                        a(f"v_lshlrev_b32 v28, 16, v{b}")
                    a(f"v_add_f32 v{rbfr}, v{rbfr}, v28")
                    a(f"v_cvt_pk_bf16_f32 v{rbfr}, v{rbfr}, v{rbfr}")
                    a(f"v_lshlrev_b32 v{rbfr}, 16, v{rbfr}")
                    a(f"v_mul_f32 v28, v{rbfr}, v{rbfr}")
                    a(f"v_fma_f32 v28, v28, s41, 1.0")
                    a(f"v_mul_f32 v28, v28, v{rbfr}")
                    a(f"v_mul_f32 v28, s42, v28")
                    a(f"v_exp_f32 v28, v28")
                    a("s_nop 0")
                    a(f"v_add_f32 v28, 1.0, v28")
                    a(f"v_rcp_f32 v28, v28")
                    a("s_nop 0")
                    a(f"v_mul_f32 v{rbfr}, v{rbfr}, v28")
                a(f"v_cvt_pk_bf16_f32 v16, v24, v25")
                a(f"v_cvt_pk_bf16_f32 v17, v26, v27")
                a(f"buffer_store_dwordx2 v[16:17], v{9 - mt}, s[16:19], 0 offen offset:{64 * nt + 16 * g}")
                a("s_nop 0")
    a.label("L_g1_end")
    a("s_endpgm")
    return kernel_desc("gemm1_kernel", 128)


def gen_gemm2(a):
    kernel_header(a, "gemm2_kernel")
    a("s_cmp_ge_u32 s2, 240")
    a("s_cbranch_scc1 L_g2_end")
    a(f"s_load_dwordx2 s[4:5], s[0:1], {KA_WO}")
    a(f"s_load_dwordx2 s[6:7], s[0:1], {KA_WS}")
    a(f"s_load_dwordx2 s[36:37], s[0:1], {KA_W2}")
    a("s_waitcnt lgkmcnt(0)")
    a("s_mov_b32 s34, 0")
    a("s_mov_b32 s33, s2")
    for j in range(5):
        a("s_cmp_ge_u32 s33, 40")
        a("s_cselect_b32 s35, 40, 0")
        a("s_cselect_b32 s42, 1, 0")
        a("s_sub_u32 s33, s33, s35")
        a("s_add_u32 s34, s34, s42")
    a("s_lshr_b32 s41, s33, 3")
    a("s_and_b32 s33, s33, 7")
    a("s_movk_i32 s25, 1280")
    a("s_mul_i32 s40, s34, " + str(P_STRIDE))
    a("s_add_u32 s40, s40, " + str(WS_P))
    a("s_add_u32 s16, s6, s40")
    a("s_addc_u32 s17, s7, 0")
    a(f"s_mov_b32 s18, {P_STRIDE}")
    a("s_mov_b32 s19, 0x20000")
    a("s_cmp_eq_u32 s34, 5")
    a("s_cbranch_scc1 L_g2_h")
    srd(a, 8, 6, 2048 * 12544, WS_O)
    srd(a, 12, 4, 6144 * 640 * 2)
    a("s_movk_i32 s24, 12544")
    a("s_mul_i32 s35, s34, 19*64")
    a("s_mov_b32 s28, 19")
    a("s_cmp_eq_u32 s34, 0")
    a("s_cselect_b32 s28, 20, s28")
    a("s_cselect_b32 s42, 0, 64")
    a("s_add_u32 s35, s35, s42")
    a("s_branch L_g2_go")
    a.label("L_g2_h")
    srd(a, 8, 6, 2048 * 3200, WS_H)
    srd(a, 12, 36, 1536 * 640 * 2)
    a("s_movk_i32 s24, 3200")
    a("s_mov_b32 s35, 0")
    a("s_mov_b32 s28, 24")
    a.label("L_g2_go")
    a("s_lshl_b32 s26, s33, 8")
    a("s_mul_i32 s26, s26, s24")
    a("s_lshl_b32 s27, s35, 1")
    a("s_add_u32 s26, s26, s27")
    a("s_mul_i32 s27, s35, s25")
    a("s_lshl_b32 s40, s41, 8")
    a("s_add_u32 s27, s27, s40")
    gemm_core(a, "g2")
    a("s_lshl_b32 s33, s33, 8")
    a("v_add_u32 v9, s33, v9")
    a("s_movk_i32 s35, 2560")
    a("v_mul_lo_u32 v9, v9, s35")
    a("v_lshlrev_b32 v10, 8, v13")
    a("v_lshl_add_u32 v10, v7, 4, v10")
    a("s_lshl_b32 s40, s41, 9")
    a("v_add_u32 v10, s40, v10")
    a("v_add_u32 v9, v9, v10")
    a("s_lshl_b32 s33, s35, 5")
    a("v_add_u32 v8, s33, v9")
    a("s_barrier")
    a("v_lshlrev_b32 v11, 14, v2")
    a("v_lshl_add_u32 v12, v6, 8, v11")
    a("v_lshl_add_u32 v12, v7, 4, v12")
    for nt in range(2):
        for mt in range(2):
            d = 64 + (nt * 2 + mt) * 16
            for g in range(4):
                a(f"ds_write_b128 v12, v[{d + 4 * g}:{d + 4 * g + 3}] offset:{mt * 8192 + 128 * nt + 32 * g}")
    a("v_lshl_add_u32 v12, v1, 4, v11")
    a("v_lshrrev_b32 v14, 4, v1")
    a("v_lshrrev_b32 v8, 1, v2")
    a("v_lshl_add_u32 v14, v8, 6, v14")
    a("s_lshr_b32 s33, s33, 5")
    a("s_and_b32 s43, s2, 7")
    a("s_lshl_b32 s43, s43, 8")
    a("v_add_u32 v14, s43, v14")
    a("v_mul_lo_u32 v14, v14, s35")
    a("v_and_b32 v15, 15, v1")
    a("v_lshlrev_b32 v15, 4, v15")
    a("v_lshl_add_u32 v15, v13, 8, v15")
    a("v_add_u32 v15, s40, v15")
    a("v_add_u32 v14, v14, v15")
    a("s_movk_i32 s43, 10240")
    a("s_waitcnt lgkmcnt(0)")
    for h in range(2):
        for i in range(8):
            a(f"ds_read_b128 v[{16 + 4 * i}:{19 + 4 * i}], v12 offset:{1024 * (8 * h + i)}")
        for i in range(8):
            a(f"s_waitcnt lgkmcnt({7 - i})")
            a(f"buffer_store_dwordx4 v[{16 + 4 * i}:{19 + 4 * i}], v14, s[16:19], 0 offen")
            a("v_add_u32 v14, s43, v14")
        a("s_nop 1")
    a.label("L_g2_end")
    a("s_endpgm")
    return kernel_desc("gemm2_kernel", 128)


def gen_final(a):
    kernel_header(a, "final_kernel")
    a("s_cmp_ge_u32 s2, 1280")
    a("s_cbranch_scc1 L_fin_end")
    a(f"s_load_dwordx2 s[4:5], s[0:1], {KA_X}")
    a(f"s_load_dwordx2 s[6:7], s[0:1], {KA_WS}")
    a(f"s_load_dwordx2 s[36:37], s[0:1], {KA_B2}")
    a(f"s_load_dwordx2 s[38:39], s[0:1], {KA_OUT}")
    a("s_waitcnt lgkmcnt(0)")
    srd(a, 8, 4, 2048 * 640 * 2)
    srd(a, 12, 6, 6 * P_STRIDE, WS_P)
    srd(a, 16, 36, 640 * 2)
    srd(a, 20, 38, 2048 * 640 * 2)
    a("s_lshl_b32 s3, s2, 8")
    a("v_add_u32 v1, s3, v0")
    a("v_lshlrev_b32 v2, 4, v1")
    a("v_lshlrev_b32 v3, 3, v1")
    a("s_mov_b32 s24, 0x0199999a")
    a("v_mul_hi_u32 v4, v1, s24")
    a("s_movk_i32 s25, 160")
    a("v_mul_lo_u32 v4, v4, s25")
    a("v_sub_u32 v4, v1, v4")
    a("v_lshlrev_b32 v4, 3, v4")
    a("buffer_load_dwordx4 v[8:11], v2, s[12:15], 0 offen")
    for j, r in ((1, 12), (2, 16), (3, 32), (4, 36), (5, 20)):
        a(f"s_mov_b32 s26, {j * P_STRIDE}")
        a(f"buffer_load_dwordx4 v[{r}:{r + 3}], v2, s[12:15], s26 offen")
    a("buffer_load_dwordx2 v[24:25], v3, s[8:11], 0 offen")
    a("buffer_load_dwordx2 v[26:27], v4, s[16:19], 0 offen")
    a("s_mov_b32 s29, 0xbfb8aa3b")
    a("s_waitcnt vmcnt(0)")
    for e in range(4):
        a(f"v_add_f32 v{8 + e}, v{8 + e}, v{12 + e}")
        a(f"v_add_f32 v{8 + e}, v{8 + e}, v{16 + e}")
        a(f"v_add_f32 v{8 + e}, v{8 + e}, v{32 + e}")
        a(f"v_add_f32 v{8 + e}, v{8 + e}, v{36 + e}")
        rbf(a, 8 + e)
        rbf(a, 20 + e)
        if e & 1:
            a(f"v_and_b32 v28, 0xffff0000, v{26 + (e >> 1)}")
            a(f"v_and_b32 v29, 0xffff0000, v{24 + (e >> 1)}")
        else:
            a(f"v_lshlrev_b32 v28, 16, v{26 + (e >> 1)}")
            a(f"v_lshlrev_b32 v29, 16, v{24 + (e >> 1)}")
        a(f"v_add_f32 v{20 + e}, v{20 + e}, v28")
        rbf(a, 20 + e)
        a(f"v_mul_f32 v30, s29, v{20 + e}")
        a("v_exp_f32 v30, v30")
        a("s_nop 0")
        a("v_add_f32 v30, 1.0, v30")
        a("v_rcp_f32 v30, v30")
        a("s_nop 0")
        a(f"v_mul_f32 v{20 + e}, v{20 + e}, v30")
        rbf(a, 20 + e)
        a(f"v_mul_f32 v{8 + e}, v{8 + e}, v{20 + e}")
        rbf(a, 8 + e)
        a(f"v_add_f32 v{8 + e}, v{8 + e}, v29")
    a("v_cvt_pk_bf16_f32 v12, v8, v9")
    a("v_cvt_pk_bf16_f32 v13, v10, v11")
    a("buffer_store_dwordx2 v[12:13], v3, s[20:23], 0 offen")
    a.label("L_fin_end")
    a("s_endpgm")
    return kernel_desc("final_kernel", 40)


def interleave(a, slots, fillers):
    n = len(slots)
    done = 0
    for i, sl in enumerate(slots):
        for ins in sl:
            a(ins)
        want = (len(fillers) * (i + 1)) // n
        while done < want:
            a(fillers[done]); done += 1


def gen_attn(a):
    O0, SA, SB, Q0, FR = 0, 96, 128, 160, 208
    kernel_header(a, "attn_kernel")
    a("s_cmp_ge_u32 s2, 256")
    a("s_cbranch_scc1 L_at_end")
    a(f"s_load_dwordx2 s[4:5], s[0:1], {KA_K}")
    a(f"s_load_dwordx2 s[6:7], s[0:1], {KA_V}")
    a(f"s_load_dwordx2 s[36:37], s[0:1], {KA_WS}")
    a("s_waitcnt lgkmcnt(0)")
    srd(a, 8, 4, 32 * 2048 * 192 * 2)
    srd(a, 12, 6, 32 * 2048 * 192 * 2)
    srd(a, 16, 36, 2048 * 12544, WS_Q)
    srd(a, 20, 36, 2048 * 12544, WS_O)
    a("s_and_b32 s33, s2, 31")
    a("s_lshr_b32 s34, s2, 5")
    a("s_mul_i32 s26, s33, 786432")
    a("s_mov_b32 s25, s26")
    a("v_and_b32 v224, 63, v0")
    a("v_lshrrev_b32 v225, 6, v0")
    a("s_nop 1")
    a("v_readfirstlane_b32 s30, v225")
    a("v_and_b32 v226, 31, v224")
    a("v_lshrrev_b32 v227, 5, v224")
    a("s_lshl_b32 s35, s34, 8")
    a("v_lshl_add_u32 v228, v225, 5, v226")
    a("v_add_u32 v228, s35, v228")
    a("s_movk_i32 s31, 12544")
    a("v_mul_lo_u32 v229, v228, s31")
    a("s_mul_i32 s35, s33, 384")
    a("v_lshl_add_u32 v229, v227, 4, v229")
    a("v_add_u32 v229, s35, v229")
    for ks in range(12):
        a(f"buffer_load_dwordx4 v[{Q0 + 4 * ks}:{Q0 + 4 * ks + 3}], v229, s[16:19], 0 offen offset:{32 * ks}")
    for q in range(3):
        a(f"v_lshl_add_u32 v230, v225, 6, v224")
        a(f"v_add_u32 v230, {512 * q}, v230")
        a("s_movk_i32 s31, 2731")
        a("v_mul_lo_u32 v231, v230, s31")
        a("v_lshrrev_b32 v231, 16, v231")
        a("v_mul_u32_u24 v232, 24, v231")
        a("v_sub_u32 v232, v230, v232")
        a("v_lshrrev_b32 v233, 1, v231")
        a("v_and_b32 v234, 7, v233")
        a("v_xor_b32 v234, v234, v232")
        a("v_mul_u32_u24 v235, 384, v231")
        a(f"v_lshl_add_u32 v{240 + q}, v234, 4, v235")
        a("v_and_b32 v234, 1, v233")
        a("v_lshlrev_b32 v234, 2, v234")
        a("v_xor_b32 v234, v234, v232")
        a(f"v_lshl_add_u32 v{243 + q}, v234, 4, v235")
    a("v_lshrrev_b32 v230, 1, v226")
    a("v_and_b32 v230, 7, v230")
    a("v_mul_u32_u24 v231, 384, v226")
    for k4 in range(4):
        a(f"v_add_u32 v232, {2 * k4}, v227")
        a("v_xor_b32 v232, v232, v230")
        a(f"v_lshl_add_u32 v{246 + k4}, v232, 4, v231")
    a("v_and_b32 v230, 15, v224")
    a("v_lshrrev_b32 v230, 2, v230")
    a("v_lshl_add_u32 v230, v227, 2, v230")
    a("v_mul_u32_u24 v230, 384, v230")
    a("v_lshrrev_b32 v231, 4, v224")
    a("v_and_b32 v231, 1, v231")
    a("v_lshl_add_u32 v230, v231, 5, v230")
    a("v_and_b32 v231, 3, v224")
    a("v_lshl_add_u32 v230, v231, 3, v230")
    a("v_add_u32 v230, 49152, v230")
    a("v_lshrrev_b32 v231, 3, v224")
    a("v_and_b32 v231, 1, v231")
    a("v_lshl_add_u32 v250, v231, 6, v230")
    a("v_xor_b32 v231, 1, v231")
    a("v_lshl_add_u32 v251, v231, 6, v230")
    for i in range(96):
        a(f"v_mov_b32 v{O0 + i}, 0")
    a("v_mov_b32 v252, 0xff800000")
    a("v_mov_b32 v253, 0")
    a("s_mov_b32 s27, 0x3dd53b94")
    a("s_lshl_b32 s32, s30, 10")
    a("s_mov_b32 s28, 16")

    def dmaK(buf):
        for q in range(3):
            a(f"s_add_u32 m0, s32, {buf * 24576 + q * 8192}")
            a("s_nop 0")
            a(f"buffer_load_dwordx4 v{240 + q}, s[8:11], s26 offen lds")
        a("s_add_u32 s26, s26, 24576")

    def dmaV(buf):
        for q in range(3):
            a(f"s_add_u32 m0, s32, {49152 + buf * 24576 + q * 8192}")
            a("s_nop 0")
            a(f"buffer_load_dwordx4 v{243 + q}, s[12:15], s25 offen lds")
        a("s_add_u32 s25, s25, 24576")

    seq = [(t, ks) for ks in range(12) for t in range(2)]
    seq2 = [(d, kk) for kk in range(4) for d in range(6)]

    def qk_slots(kbuf, S):
        def kread(i):
            t, ks = seq[i]
            f = FR + 4 * (i & 3)
            if 'nok' in EXP:
                return "s_nop 0"
            return f"ds_read_b128 v[{f}:{f + 3}], v{246 + (ks & 3)} offset:{kbuf * 24576 + t * 12288 + 128 * (ks >> 2)}"
        slots = []
        for i in range(24):
            t, ks = seq[i]
            sl = []
            if i == 0:
                sl += [kread(0), kread(1), kread(2)]
            if i + 3 < 24:
                sl += [kread(i + 3), "s_waitcnt lgkmcnt(3)"]
            else:
                sl += [f"s_waitcnt lgkmcnt({23 - i})"]
            f = FR + 4 * (i & 3)
            d = S + 16 * t
            c = "0" if ks == 0 else f"v[{d}:{d + 15}]"
            sl.append(f"v_mfma_f32_32x32x16_bf16 v[{d}:{d + 15}], v[{f}:{f + 3}], v[{Q0 + 4 * ks}:{Q0 + 4 * ks + 3}], {c}")
            slots.append(sl)
        return slots

    def pv_slots(vbuf, S):
        def vread(i):
            d, kk = seq2[i]
            f = FR + 4 * (i & 3)
            if 'nov' in EXP:
                return ["s_nop 0"]
            return [f"ds_read_b64_tr_b16 v[{f + 2 * j}:{f + 2 * j + 1}], v{250 + (d & 1)} offset:{vbuf * 24576 + 128 * (d >> 1) + (16 * kk + 8 * j) * 384}" for j in range(2)]
        slots = []
        for i in range(24):
            d, kk = seq2[i]
            sl = []
            if i == 0:
                sl += vread(0) + vread(1) + vread(2)
            if i + 3 < 24:
                sl += vread(i + 3) + ["s_waitcnt lgkmcnt(6)"]
            else:
                sl += [f"s_waitcnt lgkmcnt({2 * (23 - i)})"]
            f = FR + 4 * (i & 3)
            o = O0 + 16 * d
            sl.append(f"v_mfma_f32_32x32x16_bf16 v[{o}:{o + 15}], v[{f}:{f + 3}], v[{S + 4 * kk}:{S + 4 * kk + 3}], v[{o}:{o + 15}]")
            slots.append(sl)
        return slots

    def max_fill(S):
        f = [f"v_max3_f32 v230, v{S}, v{S + 1}, v{S + 2}"]
        for i in range(3, 31, 2):
            f.append(f"v_max3_f32 v230, v230, v{S + i}, v{S + i + 1}")
        f.append(f"v_max_f32 v230, v230, v{S + 31}")
        f.append("v_mov_b32 v231, v230")
        f.append("s_nop 1")
        f.append("v_permlane32_swap_b32 v230, v231")
        f.append("s_nop 1")
        f.append("v_max3_f32 v230, v230, v231, v252")
        f.append("v_sub_f32 v231, v252, v230")
        f.append("v_mul_f32 v231, s27, v231")
        f.append("v_exp_f32 v231, v231")
        f.append("v_mov_b32 v252, v230")
        f.append("v_mul_f32 v232, s27, v230")
        f.append("v_mul_f32 v253, v253, v231")
        f.append("v_cmp_neq_f32 vcc, 1.0, v231")
        return f

    def soft_fill(S):
        f = []
        if 'nosoft' in EXP:
            return f
        for i in range(32):
            f.append(f"v_fma_f32 v{S + i}, v{S + i}, s27, -v232")
            f.append(f"v_exp_f32 v{S + i}, v{S + i}")
        for i in range(16):
            f.append(f"v_add_f32 v253, v253, v{S + 2 * i}")
            f.append(f"v_add_f32 v253, v253, v{S + 2 * i + 1}")
            f.append(f"v_cvt_pk_bf16_f32 v{S + i}, v{S + 2 * i}, v{S + 2 * i + 1}")
        return f

    def rescale(tag):
        a(f"s_cbranch_vccz L_at_nors{tag}")
        for i in range(96):
            a(f"v_mul_f32 v{O0 + i}, v{O0 + i}, v231")
        a.label(f"L_at_nors{tag}")

    dmaK(0); dmaV(0); dmaK(1)
    a("s_waitcnt vmcnt(3)")
    a("s_barrier")
    interleave(a, qk_slots(0, SA), [])
    a("s_nop 15")
    for ins in max_fill(SA):
        a(ins)

    def body(par, last):
        Sc, Sn = (SA, SB) if par == 0 else (SB, SA)
        a("s_waitcnt vmcnt(0)")
        a("s_barrier")
        if not last:
            dmaK(par)
            dmaV(par ^ 1)
            interleave(a, qk_slots(par ^ 1, Sn), soft_fill(Sc))
        else:
            for ins in soft_fill(Sc):
                a(ins)
            a("s_nop 1")
        rescale(f"{par}{int(last)}")
        if not last:
            interleave(a, pv_slots(par, Sc), ["s_nop 7"] + max_fill(Sn))
        else:
            interleave(a, pv_slots(par, Sc), [])

    a.label("L_at_loop")
    body(0, False)
    a("s_cmp_eq_u32 s28, 1")
    a("s_cbranch_scc1 L_at_last")
    body(1, False)
    a("s_sub_u32 s28, s28, 1")
    a("s_branch L_at_loop")
    a.label("L_at_last")
    body(1, True)
    a("s_nop 15")
    a("v_mov_b32 v231, v253")
    a("s_nop 1")
    a("v_permlane32_swap_b32 v253, v231")
    a("s_nop 1")
    a("v_add_f32 v253, v253, v231")
    a("v_rcp_f32 v253, v253")
    a("v_lshlrev_b32 v230, 3, v227")
    a("v_sub_u32 v229, v229, v230")
    for d in range(6):
        for g in range(4):
            r = O0 + 16 * d + 4 * g
            for e in range(4):
                a(f"v_mul_f32 v{r + e}, v{r + e}, v253")
            a(f"v_cvt_pk_bf16_f32 v{r}, v{r}, v{r + 1}")
            a(f"v_cvt_pk_bf16_f32 v{r + 1}, v{r + 2}, v{r + 3}")
            a(f"buffer_store_dwordx2 v[{r}:{r + 1}], v229, s[20:23], 0 offen offset:{64 * d + 16 * g}")
    a.label("L_at_end")
    a("s_endpgm")
    return kernel_desc("attn_kernel", 256)


def main():
    import struct, math
    a = Asm()
    a.raw("; @launch kernel=ln_kernel grid=(512,1,1) block=(256,1,1) lds=0")
    a.raw("; @launch kernel=gemm1_kernel grid=(480,1,1) block=(512,1,1) lds=147456")
    a.raw("; @launch kernel=attn_kernel grid=(256,1,1) block=(512,1,1) lds=98304")
    a.raw("; @launch kernel=gemm2_kernel grid=(240,1,1) block=(512,1,1) lds=147456")
    a.raw("; @launch kernel=final_kernel grid=(1280,1,1) block=(256,1,1) lds=0")
    a.raw('.amdgcn_target "amdgcn-amd-amdhsa--gfx950"')
    a.raw(".text")
    descs = [gen_ln(a), gen_gemm1(a), gen_attn(a), gen_gemm2(a), gen_final(a)]
    a.raw('.section .rodata,"a"')
    txt = a.text() + "".join(descs)
    c = math.log2(math.e) / math.sqrt(192.0)
    cbits = struct.unpack("<I", struct.pack("<f", c))[0]
    txt = txt.replace("0x3dd53b94", hex(cbits))
    open(OUT, "w").write(txt)


main()
```
